```python
import torch

def _softmax(x, axis=-1):
    return torch.softmax(x, dim=axis)
def _gelu(x):
    return torch.nn.functional.gelu(x, approximate="tanh")
def _silu(x):
    return torch.nn.functional.silu(x)
def _sigmoid(x):
    return torch.sigmoid(x)
def _layernorm(x, axis=-1, eps=1e-5):
    m = x.mean(dim=axis, keepdim=True)
    v = x.var(dim=axis, keepdim=True, unbiased=False)
    return (x - m) / torch.sqrt(v + eps)
def _scatter_add(tgt, idx, src, axis=0):
    return tgt.clone().index_add_(axis, idx, src)
def _segment_sum(src, seg, n):
    out = torch.zeros((n,) + src.shape[1:], dtype=src.dtype)
    return out.index_add_(0, seg, src)
def _pad(x, pw):
    flat = tuple(v for pair in reversed(pw) for v in pair)
    return torch.nn.functional.pad(x, flat)

kernel_name = 'recurrent_scan__mha_block__glu_gated_reglu__prompt'

def setup_inputs():

    _w = (lambda a: (lambda t: t.to(torch.bfloat16) if t.is_floating_point() else t)(torch.as_tensor(a)))
    def _A_setup():
        B, S, D, H = 1, 2048, 576, 32
        return {
            "x": _w((lambda *s: torch.randn(*s, dtype=torch.bfloat16) * 0.05)(B, S, D)),
            "wqkv": _w((lambda *s: torch.randn(*s, dtype=torch.bfloat16) * 0.2)(D, 3 * D)),
            "wo": _w((lambda *s: torch.randn(*s, dtype=torch.bfloat16) * 0.2)(D, D)),
        }
    _A_in = _A_setup()

    def _B_setup():
        B, S, D, F = 1, 2048, 576, 4608
        return {
            "x": _w((lambda *s: torch.randn(*s, dtype=torch.bfloat16) * 0.05)(B, S, D)),
            "W_gate": _w((lambda *s: torch.randn(*s, dtype=torch.bfloat16) * 0.1)(D, F) * (2.0 / D) ** 0.5),
            "W_up": _w((lambda *s: torch.randn(*s, dtype=torch.bfloat16) * 0.1)(D, F) * (2.0 / D) ** 0.5),
            "W_down": _w((lambda *s: torch.randn(*s, dtype=torch.bfloat16) * 0.1)(F, D) * (1.0 / F) ** 0.5),
        }
    _B_in = _B_setup()

    return {
        "A_x": _A_in["x"],
        "A_wqkv": _A_in["wqkv"],
        "A_wo": _A_in["wo"],
        "B_x": _B_in["x"],
        "B_W_gate": _B_in["W_gate"],
        "B_W_up": _B_in["W_up"],
        "B_W_down": _B_in["W_down"],
    }

def reference(A_x, A_wqkv, A_wo, B_x, B_W_gate, B_W_up, B_W_down):
    def _A_ref(x, wqkv, wo):
        B, S, D = x.shape
        H = 32
        Dh = D // H
        qkv = (lambda x, *d: x.permute(*d))((x @ wqkv).reshape(B, S, 3, H, Dh), 2, 0, 3, 1, 4)
        q, k, v = qkv[0], qkv[1], qkv[2]
        scores = torch.einsum("bhqd,bhkd->bhqk", q, k) * (Dh ** -0.5)
        p = _softmax(scores, axis=-1)
        o = torch.einsum("bhqk,bhkd->bhqd", p, v)
        return (lambda x, *d: x.permute(*d))(o, 0, 2, 1, 3).reshape(B, S, D) @ wo

    def _B_ref(x, W_gate, W_up, W_down):
        gate = torch.einsum("bsd,df->bsf", x, W_gate)
        up = torch.einsum("bsd,df->bsf", x, W_up)
        gate = gate * (lambda x, dt: x.to(dt))(gate > 0, gate.dtype)
        h = gate * up
        return torch.einsum("bsf,fd->bsd", h, W_down)

    x = A_x
    xn = _layernorm(x, axis=-1)
    s = _A_ref(xn, A_wqkv, A_wo)
    g = _silu(_B_ref(xn, B_W_gate, B_W_up, B_W_down))
    return x + s * g
```

```python
import sys, struct
from isa import *

NAME = 'recurrent_scan__mha_block__glu_gated_reglu__prompt'
WS_QKV = 0
WS_PART = 8 << 20
WS_O = 48 << 20
WS_OX = WS_O + (2 << 20)
REC = 1152
OOB = 0x80000000
QSCALE = 1.4426950408889634 * 18 ** -0.5


def f2u(x):
    return struct.unpack('<I', struct.pack('<f', x))[0]


class Cfg:
    nsx = 2
    D = 4
    NB = 6
    pace = 6
    st_fl = 'sc1'
    ld_fl = 'sc1'
    stamps = False


S_X, S_WQ, S_WG, S_WU, S_WD, S_WS, S_WO, S_OUT, S_DBG = 8, 12, 16, 20, 24, 28, 32, 36, 40
sW, sRB, sJ = 44, 45, 46
sLB = 47
sXO = 48
sLINE, sHALF = 50, 51
sDF, sDH = 52, 53
sOFF = 54
sREC = 55
sPART = 56
sST = 57
sT0, sT1, sT2, sT3 = 58, 59, 60, 61
sMASK = 62
sXCD, sIDX = 70, 71
sSTAMP = 72

vTID, vLANE = 0, 1
vA = 2
vOGU, vOD, vOQ, vOH, vL16 = 6, 7, 8, 9, 10
vAQ = 12
vNEG = 20
vRSTD = 28
vT = 32
vP = 48
vXN = 112
aFR = A0 + 0
aH = A0 + 24
aI2 = A0 + 96
aONES = A0 + 100


def XN(t, mt):
    return vXN + (2 * t + mt) * 4


class Prog:
    def __init__(self):
        self.seq = []

    def __call__(self, *xs):
        for x in xs:
            if isinstance(x, str):
                for l in x.strip().split('\n'):
                    l = l.split(';')[0].strip()
                    if l:
                        self.seq.append(op(l))
            elif isinstance(x, (list, tuple)):
                self(*x)
            else:
                self.seq.append(x)


def srd(p, s, slot, nbytes, tmp):
    p(f'''s_mov_b32 s{s}, s{tmp}
          s_and_b32 s{s+1}, s{tmp+1}, 0xffff
          s_mov_b32 s{s+2}, {nbytes}
          s_mov_b32 s{s+3}, 0x20000''')


def stamp(p, cfg, k):
    if cfg.stamps:
        p(I(f's_memtime s[{sSTAMP+2*k}:{sSTAMP+2*k+1}]', 'raw', nops=1))


def common_setup(p, cfg, endlabel):
    p(op('s_cmp_ge_u32 s2, 256'), branch(f's_cbranch_scc1 {endlabel}'))
    l1 = smem('s_load_dwordx16 s[72:87], s[0:1], 0')
    l2 = smem('s_load_dwordx4 s[88:91], s[0:1], 64')
    p(l1, l2)
    p(f'''v_and_b32 v{vLANE}, 63, v0
          v_lshrrev_b32 v{vT}, 6, v0
          s_and_b32 s{sXCD}, s2, 7
          s_lshr_b32 s{sIDX}, s2, 3
          v_readfirstlane_b32 s{sW}, v{vT}
          v_lshlrev_b32 v{vL16}, 4, v{vLANE}''')
    p(wait(lg0=True))
    srd(p, S_X, 0, 2048 * 1152, 72)
    srd(p, S_WQ, 1, 576 * 3456, 74)
    srd(p, S_WO, 2, 576 * 1152, 76)
    srd(p, S_WG, 4, 576 * 9216, 80)
    srd(p, S_WU, 5, 576 * 9216, 82)
    srd(p, S_WD, 6, 4608 * 1152, 84)
    srd(p, S_OUT, 7, 2048 * 1152, 86)
    srd(p, S_DBG, 8, 256, 88)
    srd(p, S_WS, 9, 256 << 20, 90)


def make_ident(p, dst, t):
    p(f'''v_and_b32 v{t}, 15, v{vLANE}
          v_lshrrev_b32 v{t+1}, 4, v{vLANE}
          v_lshlrev_b32 v{t+1}, 2, v{t+1}
          v_sub_u32 v{t}, v{t}, v{t+1}          ; d = i - 4g
          v_and_b32 v{t+1}, 1, v{t}
          v_lshlrev_b32 v{t+1}, 4, v{t+1}
          v_mov_b32 v{t+2}, 0x3f80
          v_lshlrev_b32 v{t+1}, v{t+1}, v{t+2}
          v_lshrrev_b32 v{t+2}, 1, v{t}
          v_cmp_eq_u32 vcc, 0, v{t+2}
          v_cndmask_b32 v{t+3}, 0, v{t+1}, vcc
          v_cmp_eq_u32 vcc, 1, v{t+2}
          v_accvgpr_write_b32 {rn(dst)}, v{t+3}
          v_cndmask_b32 v{t+3}, 0, v{t+1}, vcc
          v_accvgpr_write_b32 {rn(dst+1)}, v{t+3}''')


NSLOT = 40


def slot_of(n):
    return (n + 36) % NSLOT


class Group:
    def __init__(self, srd, voff, sbase, lit, cost=1):
        self.srd, self.voff, self.sbase, self.lit, self.cost = srd, voff, sbase, lit, cost
        self.dma = None


def k1_groups():
    G = []
    for t in range(18):
        for h in range(2):
            G.append(Group(S_WQ, vOQ, None, (32 * t + 4 * h) * 3456, 1.35))
    for s in range(4):
        for t in range(18):
            G.append(Group(S_WG, vOGU, sLINE, s * 128 + t * 32 * 9216))
            G.append(Group(S_WU, vOGU, sLINE, s * 128 + t * 32 * 9216))
    for t2 in range(9):
        G.append(Group(S_WG, vOH, sHALF, t2 * 64 * 9216, 2))
        G.append(Group(S_WU, vOH, sHALF, t2 * 64 * 9216, 2))
    for i in range(9):
        for ks in range(9):
            if ks < 8:
                G.append(Group(S_WD, vOD, sDF, ks * 32 * 1152 + i * 128))
            else:
                G.append(Group(S_WD, vOD, sDH, i * 128))
    return G


class DmaState:
    def __init__(self):
        self.cur = None


def dma_instrs(G, n, st):
    g = G[n]
    out = [op(f's_add_u32 m0, s{sLB}, {slot_of(n) * 4096}')]
    if st.cur != (g.sbase, g.lit):
        if g.sbase is None:
            out.append(op(f's_mov_b32 s{sOFF}, {g.lit}'))
        else:
            out.append(op(f's_add_u32 s{sOFF}, s{g.sbase}, {g.lit}'))
        st.cur = (g.sbase, g.lit)
    g.dma = buf_dma(g.voff, g.srd, sOFF)
    out.append(g.dma)
    return out


def k1_setup(p, cfg):
    nsx = cfg.nsx
    sh = nsx.bit_length() - 1
    p(f'''s_lshl_b32 s{sT0}, s{sXCD}, {sh}
          s_and_b32 s{sT1}, s{sIDX}, {nsx-1}
          s_add_u32 s{sT1}, s{sT1}, s{sT0}
          s_and_b32 s{sJ}, s{sT1}, 15
          s_lshr_b32 s{sT0}, s{sT0}, 4
          s_mul_i32 s{sT0}, s{sT0}, {32//nsx}
          s_lshr_b32 s{sRB}, s{sIDX}, {sh}
          s_add_u32 s{sRB}, s{sRB}, s{sT0}
          s_lshl_b32 s{sLB}, s{sW}, 10
          s_lshl_b32 s{sT0}, s{sRB}, 2
          s_add_u32 s{sT0}, s{sT0}, s{sW}          ; T = 4*rb + w
          s_mul_i32 s{sXO}, s{sT0}, {32*1152}
          s_add_u32 s{sXO+1}, s{sXO}, {16*1152}''')
    t = vT
    p(f'''v_lshrrev_b32 v{t}, 3, v{vLANE}          ; r
          v_and_b32 v{t+1}, 7, v{vLANE}            ; p
          v_lshrrev_b32 v{t+2}, 1, v{t}
          v_xor_b32 v{t+3}, v{t+1}, v{t+2}
          v_lshlrev_b32 v{t+3}, 4, v{t+3}
          v_mul_u32_u24 v{t+4}, 1152, v{t}
          v_add_u32 v{vP}, v{t+3}, v{t+4}
          v_xor_b32 v{t+3}, 64, v{t+3}
          v_add_u32 v{vP+1}, v{t+3}, v{t+4}
          v_add_u32 v{vP+1}, {8*1152}, v{vP+1}''')


def x_dma(n):
    lc, mt, rh = n >> 2, (n >> 1) & 1, n & 1
    d = buf_dma(vP + rh, S_X, sXO + mt, lc * 128)
    return [op(f's_add_u32 m0, s{sLB}, {n*4096 - lc*128}'), d], d


def k1_setup2(p, cfg):
    t = vT
    p(f'''s_mul_i32 s{sREC}, s{sJ}, {6*64}
          s_add_u32 s{sREC}, s{sREC}, s{sT0}
          s_mul_i32 s{sREC}, s{sREC}, {REC}
          s_lshl_b32 s{sPART}, s{sRB}, 4
          s_add_u32 s{sPART}, s{sPART}, s{sJ}
          s_lshl_b32 s{sPART}, s{sPART}, 2
          s_add_u32 s{sPART}, s{sPART}, s{sW}
          s_mul_i32 s{sPART}, s{sPART}, {36*1024}
          s_add_u32 s{sPART}, s{sPART}, {WS_PART}
          s_lshr_b32 s{sT1}, s{sJ}, 1
          s_and_b32 s{sT2}, s{sJ}, 1               ; par
          s_mul_i32 s{sT1}, s{sT1}, 1152
          s_add_u32 s{sHALF}, s{sT1}, 512
          s_mul_i32 s{sT3}, s{sT2}, 640
          s_add_u32 s{sLINE}, s{sT1}, s{sT3}
          s_lshl_b32 s{sT3}, s{sT2}, 6
          s_add_u32 s{sHALF}, s{sHALF}, s{sT3}
          s_mul_i32 s{sDF}, s{sLINE}, 576
          s_mul_i32 s{sDH}, s{sHALF}, 576''')
    p(f'''v_and_b32 v{t+2}, 6, v{t}
          v_xor_b32 v{t+2}, v{t+1}, v{t+2}         ; c = p ^ (rho & 6)
          s_lshl_b32 s{sT1}, s{sW}, 3
          v_add_u32 v{t+3}, s{sT1}, v{t}
          v_mul_u32_u24 v{t+3}, 1152, v{t+3}
          v_lshl_add_u32 v{vOD}, v{t+2}, 4, v{t+3}
          s_and_b32 s{sT1}, s{sW}, 1
          s_lshl_b32 s{sT1}, s{sT1}, 4
          s_lshr_b32 s{sT3}, s{sW}, 1
          s_lshl_b32 s{sT3}, s{sT3}, 2
          s_add_u32 s{sT1}, s{sT1}, s{sT3}         ; 16hh + 4h
          v_and_b32 v{t+3}, 4, v{t}
          v_add_u32 v{t+3}, v{t+3}, v{t}
          v_add_u32 v{t+3}, s{sT1}, v{t+3}
          v_mul_u32_u24 v{t+3}, 9216, v{t+3}
          v_lshl_add_u32 v{vOGU}, v{t+2}, 4, v{t+3}
          v_and_b32 v{t+4}, 3, v{t+2}
          v_lshl_add_u32 v{vOH}, v{t+4}, 4, v{t+3}
          v_lshrrev_b32 v{t+4}, 2, v{t+2}
          v_mul_u32_u24 v{t+4}, {32*9216}, v{t+4}
          v_add_u32 v{vOH}, v{vOH}, v{t+4}''')
    p(f'''s_mul_i32 s{sT1}, s{sJ}, 216
          s_lshr_b32 s{sT3}, s{sT1}, 4             ; c0
          s_and_b32 s{sT2}, s{sW}, 1
          s_lshl_b32 s{sT2}, s{sT2}, 3
          v_lshrrev_b32 v{t+2}, 4, v{vLANE}        ; r
          v_lshl_add_u32 v{t+3}, v{t+2}, 1, s{sT2} ; 2*rho
          v_and_b32 v{t+4}, 15, v{vLANE}
          v_xor_b32 v{t+4}, v{t+4}, v{t+3}         ; c
          v_subrev_u32 v{t+4}, s{sT3}, v{t+4}
          v_and_b32 v{t+4}, 15, v{t+4}             ; (c-c0)&15
          v_cmp_gt_u32 vcc, 14, v{t+4}
          v_add_u32 v{t+4}, s{sT3}, v{t+4}
          s_lshl_b32 s{sT2}, s{sW}, 3
          v_add_u32 v{t+2}, s{sT2}, v{t+2}
          v_mul_u32_u24 v{t+2}, 3456, v{t+2}
          v_lshl_add_u32 v{t+2}, v{t+4}, 4, v{t+2}
          v_mov_b32 v{t+5}, {OOB}
          v_cndmask_b32 v{vOQ}, v{t+5}, v{t+2}, vcc''')
    p(f'''v_lshrrev_b32 v{t}, 4, v{vLANE}          ; g
          v_bfe_u32 v{t+1}, v{vLANE}, 2, 2         ; r
          v_and_b32 v{t+2}, 3, v{vLANE}            ; cc
          v_bfe_u32 v{t+3}, v{vLANE}, 2, 3         ; rho = r | (g&1)<<2
          v_lshrrev_b32 v{t+4}, 5, v{vLANE}        ; hh
          v_lshlrev_b32 v{t+4}, 10, v{t+4}
          v_lshl_add_u32 v{t+4}, v{t+3}, 7, v{t+4}
          v_lshl_add_u32 v{t+4}, v{t+2}, 3, v{t+4}
          v_lshrrev_b32 v{t+5}, 1, v{t+3}
          v_lshl_add_u32 v{vA}, v{t+5}, 5, v{t+4}
          v_xor_b32 v{vA+1}, 32, v{vA}
          v_xor_b32 v{vA+2}, 64, v{vA}
          v_xor_b32 v{vA+3}, 0x60, v{vA}
          v_lshlrev_b32 v{t+4}, 10, v{t}
          v_lshl_add_u32 v{t+4}, v{t+1}, 8, v{t+4} ; g*1024 + r*256
          v_lshlrev_b32 v{t+3}, 5, v{t+3}          ; (2*rho)<<4
          v_lshl_add_u32 v{t+5}, v{t+2}, 3, s{sT1} ; 216j + 8cc
          v_min_u32 v{t+6}, 2, v{t+2}
          v_mul_u32_u24 v{t+6}, 72, v{t+6}
          v_add_u32 v{t+6}, s{sT1}, v{t+6}''')
    for tile in range(7):
        o = 72 * (tile >> 1) + 40 * (tile & 1) if tile < 6 else 32
        src = t + 5 if tile < 6 else t + 6
        p(f'''v_add_u32 v{t+7}, {o}, v{src}
              v_and_b32 v{t+7}, 0xff, v{t+7}
              v_xor_b32 v{t+7}, v{t+7}, v{t+3}
              v_add_u32 v{vAQ+tile}, v{t+7}, v{t+4}''')
    p(f'''v_and_b32 v{t+1}, 15, v{vLANE}           ; m
          v_lshrrev_b32 v{t+2}, 1, v{t+1}
          v_xor_b32 v{t+2}, v{t+2}, v{t}           ; g ^ (m>>1)
          v_lshlrev_b32 v{t+2}, 4, v{t+2}
          v_and_b32 v{t+3}, 7, v{t+1}
          v_lshl_add_u32 v{t+2}, v{t+3}, 7, v{t+2}
          v_lshrrev_b32 v{t+3}, 3, v{t+1}
          v_lshl_add_u32 v{t+2}, v{t+3}, 12, v{t+2}
          v_add_u32 v{vP+2}, s{sLB}, v{t+2}
          v_xor_b32 v{vP+3}, 64, v{vP+2}''')
    make_ident(p, aI2, t + 8)
    for r in range(4):
        p(f'v_cmp_eq_u32 s[{sMASK+2*r}:{sMASK+2*r+1}], {r}, v{t+8}')
    p(f'v_mov_b32 v{t+9}, 0x3f803f80')
    for r in range(4):
        p(f'v_accvgpr_write_b32 {rn(aONES+r)}, v{t+9}')


def k1_xphase(p, cfg, G, st):
    vXA = vP + 2
    vSUM, vGR = vP + 8, vP + 16
    xd = []
    K0 = 20
    for n in range(K0):
        ins, d = x_dma(n)
        p(ins)
        xd.append(d)
    k1_setup2(p, cfg)
    nx, nw = K0, 0
    win = 0
    prev = []

    def stats(lc):
        out = []
        for tp in range(2):
            for mt in range(2):
                f = XN(2 * lc + tp, mt)
                first = lc == 0 and tp == 0
                out.append(mfma('16x32', vSUM + 4 * mt, aONES, f, None if first else vSUM + 4 * mt))
                out.append(mfma('16x32', vGR + 4 * mt, f, f, None if first else vGR + 4 * mt))
        return out

    for lc in range(9):
        if lc and lc % 4 == 0:
            p(f'v_add_u32 v{vXA}, 0x10000, v{vXA}\nv_add_u32 v{vXA+1}, 0x10000, v{vXA+1}')
            win += 1
        p(wait(xd[4 * lc + 3]))
        rds = []
        for tp in range(2):
            for mt in range(2):
                rds.append(ds_read('b128', XN(2 * lc + tp, mt), vXA + tp, (4 * lc + 2 * mt) * 4096 - win * 65536))
        p(rds)
        if lc:
            p(stats(lc - 1))
        p(wait(rds))
        for k in range(4):
            if nx < 36:
                ins, d = x_dma(nx)
                p(ins)
                xd.append(d)
                nx += 1
            else:
                p(dma_instrs(G, nw, st))
                nw += 1
    p(stats(8))
    t = vT
    inv = f2u(1.0 / 576)
    p(f's_mov_b32 s{sT1}, {inv}\ns_mov_b32 s{sT2}, {f2u(1e-5)}')
    for mt in range(2):
        for r in range(4):
            p(f'v_mul_f32 v{vNEG+4*mt+r}, {f2u(-1.0/576)}, v{vSUM+4*mt+r}')
    for mt in range(2):
        g = vGR + 4 * mt
        p(f'v_cndmask_b32 v{t+mt}, 0, v{g}, s[{sMASK}:{sMASK+1}]')
        for r in range(1, 4):
            p(f'v_cndmask_b32 v{t+mt}, v{t+mt}, v{g+r}, s[{sMASK+2*r}:{sMASK+2*r+1}]')
    for sw in ('16', '32'):
        p(f'v_mov_b32 v{t+2}, v{t}\nv_mov_b32 v{t+3}, v{t+1}')
        p(f'v_permlane{sw}_swap_b32 v{t}, v{t+2}\nv_permlane{sw}_swap_b32 v{t+1}, v{t+3}')
        p(f'v_add_f32 v{t}, v{t}, v{t+2}\nv_add_f32 v{t+1}, v{t+1}, v{t+3}')
    for mt in range(2):
        p(f'''v_mul_f32 v{t+2+mt}, v{vNEG+4*mt}, v{vNEG+4*mt}
              v_fma_f32 v{t+mt}, v{t+mt}, s{sT1}, -v{t+2+mt}
              v_max_f32 v{t+mt}, 0, v{t+mt}
              v_add_f32 v{t+mt}, s{sT2}, v{t+mt}''')
    for mt in range(2):
        p(f'v_rsq_f32 v{vRSTD+mt}, v{t+mt}')
    return nw


def center(q):
    t, mt, h = q >> 2, (q >> 1) & 1, q & 1
    x = XN(t, mt) + 2 * h
    T = vT + 4 * (q % 4)
    m = mfma('16x16', T, aI2, x, vNEG + 4 * mt)
    v = [op(f'v_mul_f32 v{T+r}, v{vRSTD+mt}, v{T+r}') for r in range(4)]
    v += [op(f'v_cvt_pk_bf16_f32 v{x+k}, v{T+2*k}, v{T+2*k+1}') for k in range(2)]
    return m, v


def qkv_epilogue(cfg):
    p = Prog()
    acc = lambda tile, mt: vP + (2 * tile + mt) * 4
    PK = vT
    fl = cfg.st_fl
    sU, sC = sT1, sT2
    vS, vE0, vE1, vX = vAQ, vAQ + 1, vAQ + 2, vAQ + 3
    t = vNEG
    p(f's_mul_i32 s{sU}, s{sJ}, 6\ns_mov_b32 s{sC}, {f2u(QSCALE)}')
    p(f'''v_lshrrev_b32 v{t}, 4, v{vLANE}
          v_lshl_add_u32 v{t}, v{t}, 1, s{sU}
          v_cmp_gt_u32 vcc, 32, v{t}
          v_mov_b32 v{t+1}, s{sC}
          v_lshrrev_b32 v{t+2}, 5, v{vLANE}         ; hf
          v_cndmask_b32 v{vS}, 1.0, v{t+1}, vcc
          v_lshl_add_u32 v{t+3}, v{t+2}, 2, s{sU}
          v_and_b32 v{t+4}, 31, v{vLANE}
          v_lshlrev_b32 v{t+4}, 2, v{t+4}
          v_mul_u32_u24 v{t+5}, {4*64*REC}, v{t+2}
          v_add_u32 v{t+4}, v{t+4}, v{t+5}
          v_mov_b32 v{t+6}, {OOB}
          v_cmp_gt_u32 vcc, 64, v{t+3}
          v_lshl_add_u32 v{t+3}, v{t+2}, 6, v{t+3}
          v_add_u32 v{t+5}, {2*64*REC}, v{t+4}
          v_cndmask_b32 v{vE0}, v{t+6}, v{t+4}, vcc
          v_cmp_gt_u32 vcc, 62, v{t+3}
          v_bfe_u32 v{t}, v{vLANE}, 1, 3
          v_and_b32 v{t+1}, 1, v{vLANE}
          v_cndmask_b32 v{vE1}, v{t+6}, v{t+5}, vcc
          v_lshrrev_b32 v{t+2}, 4, v{vLANE}         ; hf*2+i
          v_lshl_add_u32 v{t+1}, v{t+2}, 1, v{t+1}
          v_mul_u32_u24 v{t+3}, {64*REC}, v{t}
          v_lshl_add_u32 v{t+3}, v{t+1}, 4, v{t+3}
          v_cmp_gt_u32 vcc, 6, v{t}
          v_add_u32 v{t}, s{sU}, v{t}
          v_cndmask_b32 v{t+3}, v{t+6}, v{t+3}, vcc
          v_cmp_le_u32 vcc, 64, v{t}
          v_cndmask_b32 v{vX}, v{t+6}, v{t+3}, vcc''')

    def cvt(tile, dst):
        for mt in range(2):
            for k in range(2):
                p(f'v_cvt_pk_bf16_f32 v{dst+2*mt+k}, v{acc(tile, mt)+2*k}, v{acc(tile, mt)+2*k+1}')

    def tr(tile, src):
        for mt in range(2):
            p(mfma('16x16', acc(tile, mt), src + 2 * mt, aI2, None))

    def swp(r):
        p(f'v_permlane16_swap_b32 v{r}, v{r+2}\nv_permlane16_swap_b32 v{r+1}, v{r+3}')

    stores = []
    for pr in range(3):
        R = PK + 8 * (pr & 1)
        p(f's_add_u32 s{sT3}, s{sU}, {2*pr}\ns_cmp_ge_u32 s{sT3}, 32')
        p(branch(f's_cbranch_scc1 L_nq{pr}'))
        for k in range(16):
            p(f'v_mul_f32 v{acc(2*pr, 0)+k}, s{sC}, v{acc(2*pr, 0)+k}')
        p(label(f'L_nq{pr}'))
        cvt(2 * pr, R)
        cvt(2 * pr + 1, R + 4)
        p(f's_cmp_lt_u32 s{sT3}, 64')
        p(branch(f's_cbranch_scc1 L_nv{pr}'))
        tr(2 * pr, R)
        tr(2 * pr + 1, R + 4)
        cvt(2 * pr, R)
        cvt(2 * pr + 1, R + 4)
        p(label(f'L_nv{pr}'))
        p(nop(2))
        swp(R)
        swp(R + 4)
        for k in range(2):
            p(f's_add_u32 s{sST}, s{sREC}, {(2*pr+k)*64*REC}')
            stores.append(buf_store(R + 4 * k, 4, vL16, S_WS, sST, 0, fl))
            p(stores[-1])
    R = PK + 8
    for k in range(8):
        p(f'v_mul_f32 v{acc(6, 0)+k}, v{vS}, v{acc(6, 0)+k}')
    cvt(6, R)
    tr(6, R)
    swp(R)
    p(f's_add_u32 s{sST}, s{sREC}, {64*REC}')
    for k in range(4):
        stores.append(buf_store(R + k, 1, vE0 + (k >> 1), S_WS, sST if k & 1 else sREC, 1024, fl))
        p(stores[-1])
    cvt(6, R + 4)
    swp(R + 4)
    stores.append(buf_store(R + 4, 4, vX, S_WS, sREC, 1024, fl))
    p(stores[-1])
    return p.seq, stores


class Frag:
    def __init__(self, batch, rd, mf):
        self.batch = batch
        self.rd = rd
        self.mf = mf
        self.gap = None


def k1_main(p, cfg, G, st, nw):
    D, NB = cfg.D, cfg.NB
    frags = []
    batches = []

    def new_batch(gs):
        batches.append(list(gs))
        return len(batches) - 1

    for t in range(18):
        if t % 2 == 0:
            b = new_batch(range(2 * t, 2 * t + 4))
        for tile in range(7):
            def mf(a, t=t, tile=tile):
                return [mfma('16x32', vP + (2 * tile + mt) * 4, a, XN(t, mt), None if t == 0 else vP + (2 * tile + mt) * 4) for mt in range(2)]
            frags.append(Frag(b, [(vAQ + tile, slot_of(2 * t + h) * 4096) for h in range(2)], mf))
    nq = len(frags)
    PB = lambda jj, u, mt: vP + 16 * jj + 8 * u + 4 * mt
    last_of = {}
    first_of = {}
    for s in range(4):
        g0 = 36 + 36 * s
        t0 = 0
        for nt in (4, 3, 4, 3, 4):
            b = new_batch(range(g0 + 2 * t0, g0 + 2 * (t0 + nt)))
            for jj in range(4):
                for t in range(t0, t0 + nt):
                    for u in ((1, 0) if t == 0 else (0, 1)):
                        def mf(a, t=t, jj=jj, u=u):
                            return [mfma('16x32', PB(jj, u, mt), a, XN(t, mt), None if t == 0 else PB(jj, u, mt)) for mt in range(2)]
                        o = slot_of(g0 + 2 * t + u) * 4096
                        first_of.setdefault((s, jj, u), len(frags))
                        frags.append(Frag(b, [(vA + jj, o), (vA + jj, o + 2048)], mf))
                        last_of[(s, jj)] = len(frags) - 1
            t0 += nt
    g0 = 36 + 144
    for t0 in (0, 6, 12):
        b = new_batch(range(g0 + t0, g0 + t0 + 6))
        for jj in range(2):
            for t in range(t0, t0 + 6):
                for u in ((1, 0) if t == 0 else (0, 1)):
                    def mf(a, t=t, jj=jj, u=u):
                        return [mfma('16x32', PB(jj, u, mt), a, XN(t, mt), None if t == 0 else PB(jj, u, mt)) for mt in range(2)]
                    o = slot_of(g0 + 2 * (t >> 1) + u) * 4096
                    ar = vA + jj + 2 * (t & 1)
                    first_of.setdefault((4, jj, u), len(frags))
                    frags.append(Frag(b, [(ar, o), (ar, o + 2048)], mf))
                    last_of[(4, jj)] = len(frags) - 1
    g0 = 36 + 144 + 18
    DA = lambda i, jj, mt: vXN + 32 * (i & 1) + 8 * jj + 4 * mt
    HH = lambda ks, mt: aH + 8 * ks + 4 * mt
    dlast, dfirst = {}, {}
    for i in range(9):
        for ks in range(9):
            if ks in (0, 5):
                b = new_batch(range(g0 + 9 * i + ks, g0 + 9 * i + (5 if ks == 0 else 9)))
            for jj in range(4):
                def mf(a, i=i, ks=ks, jj=jj):
                    return [mfma('16x32', DA(i, jj, mt), a, HH(ks, mt), None if ks == 0 else DA(i, jj, mt)) for mt in range(2)]
                o = slot_of(g0 + 9 * i + ks) * 4096
                dfirst.setdefault((i, ks, jj), len(frags))
                frags.append(Frag(b, [(vA + jj, o), (vA + jj, o + 2048)], mf))
                dlast[(i, jj)] = len(frags) - 1
    batch_of = {}
    for b, gs in enumerate(batches):
        for n in gs:
            batch_of[n] = b

    S = Stream()
    QPRE = 6
    cpos = {}
    q = QPRE
    for fi, f in enumerate(frags):
        a = aFR + 4 * (fi % NB)
        m = f.mf(a)
        f.gap = S.add(m[0])
        S.add(m[1])
        if fi < nq:
            while q < 72 and (q - QPRE) * 7 <= fi * 4:
                cm, cv = center(q)
                cpos[q] = (S.add(cm, cap=12), cv)
                q += 1
    epi_gap = frags[nq].gap - 1
    win = {}
    last_use = {}
    reads = []
    pre = []
    for fi, f in enumerate(frags):
        a = aFR + 4 * (fi % NB)
        rs = []
        for h, (ar, off) in enumerate(f.rd):
            w = off >> 16
            g = frags[fi - D].gap + h if fi >= D else -1
            if win.get(ar, 0) != w:
                delta = ((w - win.get(ar, 0)) << 16) & 0xffffffff
                upd = op(f'v_add_u32 v{ar}, {hex(delta)}, v{ar}')
                lo = last_use.get(ar, -1)
                if lo < 0 and (g < 1):
                    pre.append(upd)
                else:
                    S.place(upd, max(lo, 0), g - 1)
                win[ar] = w
            r = ds_read('b64_tr_b16', a + 2 * h, ar, off & 0xffff)
            rs.append(r)
            if g < 0:
                pre.append(r)
            else:
                S.put(g, r)
            last_use[ar] = g
        reads.append(rs)
    bar_gap = {}
    seen = set()
    waits = {}
    for fi, f in enumerate(frags):
        if fi > 0:
            waits[fi] = wait(reads[fi])
            S.put(f.gap - 1, waits[fi])
    for fi, f in enumerate(frags):
        if f.batch not in seen:
            seen.add(f.batch)
            if fi >= D + 1:
                g = frags[fi - D].gap
                bar_gap[f.batch] = g
                S.put(g, barrier())
                f.vmwait = waits[fi - D]
            else:
                assert fi == 0
                bar_gap[f.batch] = -1
                f.vmwait = None
    g = 0
    for n in range(nw, len(G)):
        lo = g
        if n >= NSLOT:
            bfree = batch_of[n - NSLOT] + 2
            lo = max(lo, bar_gap[bfree] + 1)
        ins = dma_instrs(G, n, st)
        plan = S.chain(ins, lo, bar_gap[batch_of[n]] - 2)
        g = max(plan[-1] + 1, plan[-1] + int(cfg.pace * G[n].cost) - 3)
        G[n].gap = plan[-1]
    for fi, f in enumerate(frags):
        if getattr(f, 'vmwait', None) is not None:
            f.vmwait.targets.append(G[batches[f.batch][-1]].dma)
    for q in range(QPRE, 72):
        g, cv = cpos[q]
        hi = frags[7 * (q >> 2)].gap - 2
        if q + 4 in cpos:
            hi = min(hi, cpos[q + 4][0] - 1)
        S.chain(cv, g + 3, hi)
    prev_end = 0
    for s in range(5):
        for jj in range(4 if s < 4 else 2):
            lo = max(frags[last_of[(s, jj)]].gap + 1 + 3, prev_end)
            nxt = (s + 1, jj, 1) in first_of
            T = vT + 4 * (jj & 3)
            c1 = [op(f'v_max_f32 v{PB(jj, 0, 0)+k}, 0, v{PB(jj, 0, 0)+k}') for k in range(8)]
            c1 += [op(f'v_mul_f32 v{PB(jj, 0, 0)+k}, v{PB(jj, 0, 0)+k}, v{PB(jj, 1, 0)+k}') for k in range(8)]
            c1 += [op(f'v_cvt_pk_bf16_f32 v{T+k}, v{PB(jj, 0, 0)+2*k}, v{PB(jj, 0, 0)+2*k+1}') for k in range(4)]
            ks = 2 * s + (jj >> 1)
            c2 = [op(f'v_accvgpr_write_b32 {rn(HH(ks, k >> 1) + 2 * (jj & 1) + (k & 1))}, v{T+k}') for k in range(4)]
            hi2 = frags[dfirst[(0, ks, 0)]].gap - 2
            hi1 = frags[first_of[(s + 1, jj, 1)]].gap - 1 if nxt else hi2 - 2
            plan = S.chain(c1, lo, hi1)
            prev_end = plan[-1]
            if jj == (3 if s < 4 else 1) or not nxt:
                pend = getattr(S, 'pend', []) + c2
                plan = S.chain(pend, prev_end, hi2)
                prev_end = plan[-1]
                S.pend = []
            else:
                S.pend = getattr(S, 'pend', []) + c2
    vPK = vXN + 64
    chunk_of = {}
    for T in range(36):
        c, u = divmod(T, 9)
        for mt in range(2):
            if u == 4:
                chunk_of[(T, mt)] = (9 * c + 4, mt)
            elif u < 4:
                chunk_of[(T, mt)] = (9 * c + (u & ~1) + mt, u & 1)
            else:
                chunk_of[(T, mt)] = (9 * c + 5 + ((u - 5) & ~1) + mt, (u - 5) & 1)
    have = {}
    tail = []
    pstores = []
    cur_so = [None]
    prev_end = 0
    for i in range(9):
        ch = []
        for jj in range(4):
            for mt in range(2):
                c, pos = chunk_of[(4 * i + jj, mt)]
                R = vPK + 4 * (c % 16)
                for k in range(2):
                    ch.append(op(f'v_cvt_pk_bf16_f32 v{R+2*pos+k}, v{DA(i, jj, mt)+2*k}, v{DA(i, jj, mt)+2*k+1}'))
                have[c] = have.get(c, 0) + 1
                if have[c] == 2:
                    if cur_so[0] != c >> 2:
                        ch.append(op(f's_add_u32 s{sST}, s{sPART}, {(c >> 2) * 4096}'))
                        cur_so[0] = c >> 2
                    pstores.append(buf_store(R, 4, vL16, S_WS, sST, (c & 3) * 1024, cfg.st_fl))
                    ch.append(pstores[-1])
        if i < 8:
            lo = max(frags[dlast[(i, 3)]].gap + 2, prev_end)
            hi = frags[dfirst[(i + 2, 0, 0)]].gap - 1 if i < 7 else None
            plan = S.chain(ch, lo, hi)
            prev_end = plan[-1] + 1
        else:
            tail = ch
    for q in range(QPRE):
        cm, cv = center(q)
        if q >= 4:
            p(center(q - 4)[1])
        p(cm)
    p(wait(G[batches[0][-1]].dma), barrier())
    p(pre)
    for q in range(QPRE - 4, QPRE):
        p(center(q)[1])
    p(wait(reads[0]))
    stamp(p, cfg, 2)
    epi, qstores = qkv_epilogue(cfg)
    marks = {frags[first_of[(4, 0, 1)]].gap: 5, frags[dfirst[(0, 0, 0)]].gap: 6}
    for g in range(len(S)):
        if g in marks:
            stamp(p, cfg, marks[g])
        p(S.m[g], S.s[g], S.d[g], S.v[g])
        if g == epi_gap:
            stamp(p, cfg, 3)
            p(nop(8))
            p(epi)
            stamp(p, cfg, 4)
    p(tail)
    print(f'K1 stream: {len(S)} mfma, est {S.est_cycles()} cycles, overflows {S.over}', file=sys.stderr)
    lead = [bar_gap[batch_of[n]] - G[n].gap for n in range(nw, len(G))]
    print(f'   dma lead (gaps): min {min(lead)} max {max(lead)}', file=sys.stderr)


def write_stamps(p, cfg, n, base):
    if not cfg.stamps:
        return
    p(I('s_waitcnt lgkmcnt(0)', 'raw', nops=1))
    p(f's_lshl_b32 s{sT0}, s2, 2\ns_add_u32 s{sT0}, s{sT0}, s{sW}\ns_lshl_b32 s{sT0}, s{sT0}, 6\ns_add_u32 s{sT0}, s{sT0}, {base}')
    p(f'v_mov_b32 v{vT+1}, 0')
    for k in range(n):
        p(f'v_mov_b32 v{vT}, s{sSTAMP+2*k}')
        p(buf_store(vT, 1, vT + 1, S_WS, sT0, 4 * k))


WS_STAMP = 64 << 20


def gen_k1(cfg):
    p = Prog()
    common_setup(p, cfg, 'L_k1_end')
    stamp(p, cfg, 0)
    k1_setup(p, cfg)
    G = k1_groups()
    st = DmaState()
    nw = k1_xphase(p, cfg, G, st)
    stamp(p, cfg, 1)
    k1_main(p, cfg, G, st, nw)
    stamp(p, cfg, 7)
    p(wait(vm0=True))
    stamp(p, cfg, 8)
    write_stamps(p, cfg, 9, WS_STAMP)
    p(label('L_k1_end'), raw('s_endpgm'))
    return finalize(p.seq, verbose=0, name='k1')


BIAS = 90.0
vS = 112
vO = (176, 16)
vQ, vQX, vKX = 48, 80, 88
vIDX, vOV0, vOV1, vOKX, vXW, vXR2, vXR1, vTA = 2, 3, 4, 5, 6, 7, 8, 104
vTB = 244
sH, sQB, sKB, sVB, sQ0, sFB = 45, 46, 48, 49, 50, 51
sVM = 62
LDS_MX = 0
LDS_OX = 1024


def KM(t):
    return A0 + 228 + 4 * t if t < 7 else 208 + 4 * (t - 7)


def VV(t, i):
    return A0 + 100 + 8 * t + 4 * i


def att_setup(p, cfg):
    t = vTB
    p(f"""s_and_b32 s{sH}, s{sIDX}, 3
          s_lshl_b32 s{sT0}, s{sXCD}, 2
          s_add_u32 s{sH}, s{sH}, s{sT0}
          s_lshr_b32 s{sQB}, s{sIDX}, 2
          s_lshl_b32 s{sT0}, s{sH}, 6
          s_lshl_b32 s{sT1}, s{sW}, 4
          s_add_u32 s{sT1}, s{sT1}, s{sT0}
          s_mul_i32 s{sKB}, s{sT1}, {REC}
          s_add_u32 s{sVB}, s{sKB}, {64*64*REC + WS_QKV}
          s_add_u32 s{sKB}, s{sKB}, {32*64*REC + WS_QKV}
          s_lshl_b32 s{sT1}, s{sQB}, 3
          s_add_u32 s{sT1}, s{sT1}, s{sT0}
          s_mul_i32 s{sQ0}, s{sT1}, {REC}
          s_mov_b32 s{sVM}, 0x0011ffff
          s_mov_b32 s{sVM+1}, 0x0011ffff
          s_mov_b32 s{sFB}, 0
          v_mov_b32 v{vIDX}, 0xdddddddd
          v_and_b32 v{t}, 31, v{vLANE}             ; d
          v_lshrrev_b32 v{t+1}, 5, v{vLANE}        ; hf
          v_mul_u32_u24 v{t+2}, {REC}, v{t+1}
          v_lshl_add_u32 v{vOKX}, v{t}, 2, v{t+2}
          v_lshrrev_b32 v{t+2}, 2, v{t}
          v_and_b32 v{t+2}, 1, v{t+2}
          v_lshl_add_u32 v{t+2}, v{t+1}, 2, v{t+2}
          v_lshlrev_b32 v{t+2}, 4, v{t+2}
          v_add_u32 v{t+2}, 1024, v{t+2}
          v_cmp_gt_u32 vcc, 16, v{t}
          v_add_u32 v{t+3}, 32, v{t+2}
          v_add_u32 v{t+4}, 0x100, v{vL16}
          v_cndmask_b32 v{vOV0}, v{t+2}, v{vL16}, vcc
          v_cndmask_b32 v{vOV1}, v{t+3}, v{t+4}, vcc
          v_and_b32 v{t+2}, 27, v{t}
          v_cmp_eq_u32 vcc, 17, v{t+2}
          v_mov_b32 v{t+3}, 0x3f803f80
          s_mul_i32 s{sT0}, s{sW}, 5120
          v_cndmask_b32 v{t}, 0, v{t+3}, vcc
          v_add_u32 v{vXW}, s{sT0}, v{vL16}
          s_add_u32 s{sT1}, s{sW}, 2
          s_and_b32 s{sT1}, s{sT1}, 3
          s_mul_i32 s{sT1}, s{sT1}, 5120
          v_add_u32 v{vXR2}, s{sT1}, v{vL16}
          s_add_u32 s{sT1}, s{sW}, 1
          s_and_b32 s{sT1}, s{sT1}, 3
          s_mul_i32 s{sT1}, s{sT1}, 5120
          v_add_u32 v{vXR1}, s{sT1}, v{vL16}""")


def mov(dst, src):
    return op(f'v_accvgpr_write_b32 {rn(dst)}, {src}') if dst >= A0 else op(f'v_mov_b32 {rn(dst)}, {src}')


def att_loads(p, cfg):
    fl = cfg.ld_fl
    L = {}
    for s in (3, 0, 1, 2):
        p(f"""s_add_u32 s{sT0}, s{sW}, {1+s}
              s_and_b32 s{sT0}, s{sT0}, 3
              s_mul_i32 s{sT0}, s{sT0}, {2*REC}
              s_add_u32 s{sT0}, s{sT0}, s{sQ0}""")
        L['q', s] = [buf_load(vQ + 8 * s + 4 * k, 4, vL16, S_WS, sT0, k * REC, fl) for k in range(2)]
        L['q', s].append(buf_load(vQX + 2 * s, 1, vOKX, S_WS, sT0, 1024, fl))
        p(L['q', s])
        if s == 3:
            kt = list(range(0, 2))
        elif s == 0:
            kt = list(range(2, 16))
        else:
            kt = []
        for t in kt:
            if t % 2 == 0:
                p(f's_add_u32 s{sT1}, s{sKB}, {t*REC}')
                L['kx', t] = buf_load(vKX + t, 1, vOKX, S_WS, sT1, 1024, fl)
                p(L['kx', t], mov(vKX + t + 1, f'v{vTB+3}'))
            L['k', t] = buf_load(KM(t), 4, vL16, S_WS, sT1, (t & 1) * REC, fl)
            p(L['k', t])
    return L


def att_vloads(p, cfg, L, ts):
    for t in ts:
        for r in range(8):
            p(mov(VV(t, 0) + r, f'v{vTB}'))
        if t % 2 == 0:
            p(f's_add_u32 s{sT1}, s{sVB}, {t*REC}')
        p(f's_mov_b64 exec, s[{sVM}:{sVM+1}]')
        L['v', t] = [buf_load(VV(t, i), 4, vOV0 + i, S_WS, sT1, (t & 1) * REC, cfg.ld_fl) for i in range(2)]
        p(L['v', t])
        p('s_mov_b64 exec, -1')


def qk(buf, s, t):
    S = vS + 32 * buf
    return (mfma('32x4_2b', S, vKX + (t & ~1), vQX + 2 * s, None, f'cbsz:1 abid:{t & 1}'),
            mfma('32x16', S, KM(t), vQ + 8 * s, S),
            mfma('32x16', S + 16, KM(t), vQ + 8 * s + 4, S + 16))


def att_max(p, cfg):
    t = vTA
    p(f'v_mov_b32 v{vQX+7}, 0')
    x0, x1 = qk(0, 3, 0), qk(1, 3, 1)
    p(x0[0], x1[0], x0[1], x1[1], x0[2], x1[2])
    for k in range(2):
        for r in range(20):
            if r % 10 < 10:
                p(f'v_mov_b32 v{vO[k] + 16*(r//10) + r % 10}, 0')
    for k in range(2):
        regs = [vS + 16 * k + r for r in range(16)] + [vS + 32 + 16 * k + r for r in range(16)]
        p(f'v_max_f32 v{t+k}, v{regs[0]}, v{regs[1]}')
        for r in range(2, 32, 2):
            p(f'v_max3_f32 v{t+k}, v{regs[r]}, v{regs[r+1]}, v{t+k}')
    p(f"""v_permlane32_swap_b32 v{t}, v{t+1}
          v_max_f32 v{t}, v{t}, v{t+1}
          v_sub_f32 v{t}, {f2u(-BIAS)}, v{t}
          v_cvt_pk_bf16_f32 v{t+1}, v{t}, v{t}
          v_and_b32 v{t+1}, 0xffff0000, v{t+1}
          v_sub_f32 v{t}, v{t}, v{t+1}
          v_cvt_pk_bf16_f32 v{vQX+7}, v{t+1}, v{t}
          v_lshrrev_b32 v{t+2}, 2, v{vL16}
          s_lshl_b32 s{sT0}, s{sW}, 8
          v_add_u32 v{t+3}, s{sT0}, v{t+2}""")
    w = ds_write('b32', t + 3, vQX + 7, LDS_MX)
    p(w)
    for s in range(3):
        p(f"""s_add_u32 s{sT0}, s{sW}, {1+s}
              s_and_b32 s{sT0}, s{sT0}, 3
              s_lshl_b32 s{sT0}, s{sT0}, 8
              v_add_u32 v{t+4+s}, s{sT0}, v{t+2}""")
    p(wait(w), barrier())
    for s in range(3):
        p(ds_read('b32', vQX + 2 * s + 1, t + 4 + s, LDS_MX))


def att_main(p, cfg, L):
    def ox(kind, addr, O, par):
        base = LDS_OX + par * 20480
        out = []
        for k in range(2):
            for h in range(2):
                a = (addr, O + 16 * k + 4 * h, base + (2 * k + h) * 1024)
                out.append(ds_write('b128', *a) if kind == 'w' else ds_read('b128', a[1], a[0], a[2]))
            a = (addr, O + 16 * k + 8, base + 4096 + 8 * k)
            out.append(ds_write('b64', *a) if kind == 'w' else ds_read('b64', a[1], a[0], a[2]))
        return out

    def pv(u, k, i):
        s, t = divmod(u, 16)
        return smfmac(vO[s & 1] + 16 * k, VV(t, i), vS + 32 * (u & 1) + 16 * k + 8 * i, vIDX)

    p(qk(0, 0, 0))
    extra = {}
    rd = None
    for r in range(1, 4):
        O = vO[(r - 1) & 1]
        ws = ox('w', vXW, O, r & 1)
        for k, w in enumerate(ws):
            extra.setdefault((16 * r + 1 + k // 3, ('a0', 'a1', 'b0')[k % 3]), []).append(w)
        extra.setdefault((16 * r + 4, 'a0'), []).extend([wait(ws), barrier()])
        rd = ox('r', vXR2 if r < 3 else vXR1, O, r & 1)
        for k, w in enumerate(rd):
            extra.setdefault((16 * r + 5 + k // 3, ('a0', 'a1', 'b0')[k % 3]), []).append(w)
        extra.setdefault((16 * r + 8, 'a0'), []).append(wait(rd))
    for t in range(16):
        extra.setdefault((t, 'X' if t else 'pre'), []).append(wait(L['v', t]))
        if t < 14:
            extra.setdefault((t, 'a1'), []).append(wait(L['k', t + 2]))
    for u in range(64):
        S = vS + 32 * (u & 1)
        E = lambda a, b: [op(f'v_exp_f32 v{S+k}, v{S+k}') for k in range(a, b)]
        ex = lambda nm: extra.get((u, nm), [])
        nx = qk((u + 1) & 1, *divmod(u + 1, 16)) if u < 63 else None
        p(ex('pre'), E(0, 2))
        if u:
            p(pv(u - 1, 1, 1), ex('b1'))
        p(E(2, 5))
        if nx:
            p(nx[0])
        p(ex('X'), E(5, 13), pv(u, 0, 0), ex('a0'), E(13, 18), pv(u, 0, 1), ex('a1'), E(18, 21))
        if nx:
            p(nx[1])
        p(E(21, 24))
        if nx:
            p(nx[2])
        p(E(24, 28), pv(u, 1, 0), ex('b0'), E(28, 32))
    p(pv(63, 1, 1))


def att_final(p, cfg):
    t = vTA
    O, R = vO[1], vO[0]
    fl = cfg.st_fl
    p(f"""s_lshl_b32 s{sT0}, s{sQB}, 2
          s_add_u32 s{sT0}, s{sT0}, s{sW}
          s_lshl_b32 s{sT1}, s{sT0}, 16
          s_lshr_b32 s{sT2}, s{sH}, 1
          s_lshl_b32 s{sT2}, s{sT2}, 10
          s_add_u32 s{sT1}, s{sT1}, s{sT2}
          s_and_b32 s{sT2}, s{sH}, 1
          s_lshl_b32 s{sT2}, s{sT2}, 9
          s_add_u32 s{sT1}, s{sT1}, s{sT2}
          s_add_u32 s{sT1}, s{sT1}, {WS_O}
          s_add_u32 s{sT2}, s{sT1}, 0x8000
          s_lshl_b32 s{sT0}, s{sT0}, 13
          s_lshl_b32 s{sT3}, s{sH}, 7
          s_add_u32 s{sT0}, s{sT0}, s{sT3}
          s_add_u32 s{sT0}, s{sT0}, {WS_OX}
          v_and_b32 v{t}, 15, v{vLANE}
          v_lshlrev_b32 v{t}, 4, v{t}
          v_bfe_u32 v{t+1}, v{vLANE}, 4, 1
          v_lshl_add_u32 v{t}, v{t+1}, 14, v{t}
          v_lshrrev_b32 v{t+1}, 5, v{vLANE}
          v_lshl_add_u32 v{t}, v{t+1}, 8, v{t}
          v_and_b32 v{t+2}, 31, v{vLANE}
          v_lshlrev_b32 v{t+2}, 2, v{t+2}
          v_lshl_add_u32 v{t+1}, v{t+1}, 12, v{t+2}""")
    for k in range(2):
        for r in (9, 0, 1, 2, 3, 4, 5, 6, 7, 8):
            p(f'v_add_f32 v{O+16*k+r}, v{O+16*k+r}, v{R+16*k+r}')
    p(label('L_att_fin'))
    for k in range(2):
        p(f'v_rcp_f32 v{t+2+k}, v{O+16*k+9}')
    p(f'v_min_f32 v{t+4}, v{O+9}, v{O+25}\nv_max_f32 v{t+5}, v{O+9}, v{O+25}\nv_mul_f32 v{t+5}, {f2u(256.0)}, v{t+5}\nv_mul_f32 v{t+5}, 0, v{t+5}')
    for k in range(2):
        for r in range(9):
            p(f'v_mul_f32 v{O+16*k+r}, v{t+2+k}, v{O+16*k+r}')
            p(f'v_fma_f32 v{t+5}, 0, v{O+16*k+r}, v{t+5}')
    p(f"""v_add_f32 v{t+4}, v{t+4}, v{t+5}
          v_cmp_nle_f32 vcc, {f2u(2.0**-100)}, v{t+4}
          s_cmp_eq_u32 s{sFB}, 0
          s_cselect_b64 s[{sVM+2}:{sVM+3}], -1, 0
          s_and_b64 vcc, vcc, s[{sVM+2}:{sVM+3}]""")
    p(branch('s_cbranch_scc1 L_att_slow'))
    st = []
    for k in range(2):
        for r in range(4):
            p(f'v_cvt_pk_bf16_f32 v{R+4*k+r}, v{O+16*k+2*r}, v{O+16*k+2*r+1}')
        st.append(buf_store(R + 4 * k, 4, t, S_WS, sT1 + k, 0, fl))
        p(st[-1])
    p(f'v_permlane32_swap_b32 v{O+8}, v{O+24}\nv_cvt_pk_bf16_f32 v{R+8}, v{O+8}, v{O+24}')
    st.append(buf_store(R + 8, 1, t + 1, S_WS, sT0, 0, fl))
    p(st[-1])
    return st


def att_slow(cfg):
    p = Prog()
    t = vTB + 4
    O = vO[1]
    sC, sK, sV = 66, 67, 68
    T = 15
    fl = cfg.ld_fl
    p(label('L_att_slow'), wait(vm0=True, lg0=True))
    p(f"""s_mov_b32 s{sFB}, 1
          v_mov_b32 v{vQX+7}, 0
          v_mov_b32 v{t}, 0xff800000
          v_mov_b32 v{t+1}, 0xff800000""")
    for ps in range(2):
        p(f"""s_mul_i32 s{sK}, s{sW}, {16*REC}
              s_sub_u32 s{sV}, s{sVB}, s{sK}
              s_sub_u32 s{sK}, s{sKB}, s{sK}
              s_mov_b32 s{sC}, 64""")
        p(label(f'L_slow{ps}'))
        p(buf_load(vKX + 14, 1, vOKX, S_WS, sK, 1024, fl), buf_load(KM(T), 4, vL16, S_WS, sK, 0, fl))
        if ps:
            p(f's_mov_b64 exec, s[{sVM}:{sVM+1}]')
            p([buf_load(VV(T, i), 4, vOV0 + i, S_WS, sV, 0, fl) for i in range(2)])
            p('s_mov_b64 exec, -1')
        p(wait(vm0=True))
        p(mfma('32x4_2b', vS, vKX + 14, vQX + 6, None, 'cbsz:1 abid:0'),
          mfma('32x16', vS, KM(T), vQ + 24, vS), mfma('32x16', vS + 16, KM(T), vQ + 28, vS + 16))
        for k in range(2):
            if ps == 0:
                for r in range(0, 16, 2):
                    p(f'v_max3_f32 v{t+k}, v{vS+16*k+r}, v{vS+16*k+r+1}, v{t+k}')
            else:
                for r in range(16):
                    p(f'v_sub_f32 v{vS+16*k+r}, v{vS+16*k+r}, v{t+k}')
                for r in range(16):
                    p(f'v_exp_f32 v{vS+16*k+r}, v{vS+16*k+r}')
                for i in range(2):
                    p(smfmac(O + 16 * k, VV(T, i), vS + 16 * k + 8 * i, vIDX))
        p(f"""s_add_u32 s{sK}, s{sK}, {REC}
              s_add_u32 s{sV}, s{sV}, {REC}
              s_sub_u32 s{sC}, s{sC}, 1
              s_cmp_lg_u32 s{sC}, 0""")
        p(nop(16), branch(f's_cbranch_scc1 L_slow{ps}'))
        if ps == 0:
            for k in range(2):
                p(f"""v_mov_b32 v{t+2}, v{t+k}
                      v_permlane32_swap_b32 v{t+k}, v{t+2}
                      v_max_f32 v{t+k}, v{t+k}, v{t+2}""")
            for r in range(32):
                p(f'v_mov_b32 v{O+r}, 0')
    p(nop(16), branch('s_branch L_att_fin'))
    return finalize(p.seq, name='slow')


def gen_k2(cfg):
    p = Prog()
    common_setup(p, cfg, 'L_k2_end')
    stamp(p, cfg, 0)
    att_setup(p, cfg)
    L = att_loads(p, cfg)
    att_vloads(p, cfg, L, range(0, 10))
    stamp(p, cfg, 1)
    att_max(p, cfg)
    att_vloads(p, cfg, L, range(10, 16))
    stamp(p, cfg, 2)
    att_main(p, cfg, L)
    stamp(p, cfg, 3)
    att_final(p, cfg)
    stamp(p, cfg, 4)
    p(wait(vm0=True))
    stamp(p, cfg, 5)
    write_stamps(p, cfg, 6, WS_STAMP + 65536)
    p(label('L_k2_end'), raw('s_endpgm'))
    return finalize(p.seq, verbose=12, name='k2') + att_slow(cfg)


def gen_k3(cfg):
    p = Prog()
    common_setup(p, cfg, 'L_k3_end')
    stamp(p, cfg, 0)
    sT16, sCOL, sMID, sPB, sOB = 45, 46, 48, 49, 50
    vWM, vWX, vWMM, vWXM, vPM, vOX, vXO, vXM = 6, 7, 8, 9, 11, 12, 13, 14
    vB, vSA, vXX = 16, 48, 68
    vOF = 80
    PR = lambda j: A0 + 96 + 10 * j
    aID = A0 + 94
    t = 36
    fl = cfg.ld_fl
    p(f"""s_lshl_b32 s{sLB}, s{sW}, 10
          s_lshl_b32 s{sT0}, s{sXCD}, 2
          s_lshr_b32 s{sT1}, s{sIDX}, 3
          s_add_u32 s{sT0}, s{sT0}, s{sT1}
          s_lshl_b32 s{sT0}, s{sT0}, 2
          s_add_u32 s{sT16}, s{sT0}, s{sW}
          s_bfe_u32 s{sT0}, s{sIDX}, 0x20001       ; c'
          s_and_b32 s{sT1}, s{sIDX}, 1             ; ty
          s_mul_i32 s{sT0}, s{sT0}, 9
          s_mul_i32 s{sT2}, s{sT1}, 5
          s_add_u32 s{sCOL}, s{sT0}, s{sT2}
          s_add_u32 s{sMID}, s{sT0}, 4
          s_lshl_b32 s{sT1}, s{sT1}, 31
          s_lshr_b32 s{sT0}, s{sT16}, 3
          s_lshl_b32 s{sT0}, s{sT0}, 6
          s_bfe_u32 s{sT2}, s{sT16}, 0x20001
          s_add_u32 s{sT0}, s{sT0}, s{sT2}
          s_mul_i32 s{sPB}, s{sT0}, {36*1024}
          s_add_u32 s{sPB}, s{sPB}, {WS_PART}
          s_and_b32 s{sT3}, s{sT16}, 1             ; mt
          s_lshl_b32 s{sOB}, s{sT16}, 14
          s_add_u32 s{sOB}, s{sOB}, {WS_O}
          v_lshrrev_b32 v{t}, 3, v{vLANE}          ; rho
          v_and_b32 v{t+1}, 7, v{vLANE}
          v_and_b32 v{t+2}, 6, v{t}
          v_xor_b32 v{t+1}, v{t+1}, v{t+2}         ; c
          s_and_b32 s{sT0}, s{sW}, 1
          s_lshr_b32 s{sT2}, s{sW}, 1
          s_mul_i32 s{sST}, s{sT0}, 20
          s_lshl_b32 s{sOFF}, s{sT2}, 3
          s_add_u32 s{sST}, s{sST}, s{sOFF}
          v_add_u32 v{t+2}, s{sST}, v{t}
          v_mul_u32_u24 v{t+2}, 1152, v{t+2}
          s_mul_i32 s{sST}, s{sT0}, 144
          s_mul_i32 s{sOFF}, s{sT2}, 36
          s_add_u32 s{sST}, s{sST}, s{sOFF}
          s_add_u32 s{sST}, s{sST}, 16
          v_lshrrev_b32 v{t+3}, 2, v{t}
          v_mul_u32_u24 v{t+3}, 68, v{t+3}
          v_add3_u32 v{t+3}, v{t+3}, v{t}, s{sST}
          v_mul_u32_u24 v{t+3}, 1152, v{t+3}
          s_lshl_b32 s{sST}, s{sCOL}, 5
          v_lshl_add_u32 v{t+4}, v{t+1}, 4, s{sST}
          v_add_u32 v{vWM}, v{t+4}, v{t+2}
          v_add_u32 v{vWX}, v{t+4}, v{t+3}
          s_lshl_b32 s{sST}, s{sMID}, 5
          s_or_b32 s{sST}, s{sST}, s{sT1}
          v_and_b32 v{t+4}, 1, v{t+1}
          v_lshl_add_u32 v{t+4}, v{t+4}, 4, s{sST}
          v_lshrrev_b32 v{t+5}, 1, v{t+1}
          v_mul_u32_u24 v{t+5}, {36*1152}, v{t+5}
          v_add3_u32 v{vWMM}, v{t+4}, v{t+2}, v{t+5}
          v_lshlrev_b32 v{t+5}, 3, v{t+5}
          v_add3_u32 v{vWXM}, v{t+4}, v{t+3}, v{t+5}""")
    wd = []
    for n in range(23):
        if n < 16:
            v, lit = vWM, n * 36 * 1152
        elif n < 18:
            v, lit = vWX, (n - 16) * 288 * 1152
        elif n < 22:
            v, lit = vWMM, (n - 18) * 144 * 1152
        else:
            v, lit = vWXM, 0
        p(f's_add_u32 m0, s{sLB}, {n*4096}\ns_mov_b32 s{sOFF}, {lit}')
        wd.append(buf_dma(v, S_WO, sOFF))
        p(wd[-1])
    p(f"""v_and_b32 v{t}, 15, v{vLANE}             ; m
          v_lshrrev_b32 v{t+1}, 4, v{vLANE}        ; g
          v_lshlrev_b32 v{t+2}, 2, v{t}
          v_lshl_add_u32 v{vOX}, v{t+1}, 9, v{t+2}
          v_mul_u32_u24 v{t+2}, 1152, v{t}
          v_lshl_add_u32 v{t+2}, v{t+1}, 3, v{t+2}
          s_lshl_b32 s{sOFF}, s{sCOL}, 5
          v_add_u32 v{vXO}, s{sOFF}, v{t+2}
          v_add_u32 v{vXM}, s{sST}, v{t+2}
          s_lshl_b32 s{sT0}, s{sT3}, 3
          s_lshl_b32 s{sT2}, s{sMID}, 10
          s_add_u32 s{sT0}, s{sT0}, s{sT2}
          s_or_b32 s{sT0}, s{sT0}, s{sT1}
          v_add_u32 v{vPM}, s{sT0}, v{vL16}
          s_add_u32 s{sT0}, s{sCOL}, s{sT3}
          s_lshl_b32 s{sT0}, s{sT0}, 10
          v_add_u32 v15, s{sT0}, v{vL16}""")
    for ks in range(16):
        if ks % 4 == 0:
            p(f's_add_u32 s{sOFF}, s{sOB}, {ks*1024}')
        p(buf_load(vOF + 4 * ks, 4, vL16, S_WS, sOFF, (ks & 3) * 1024, fl))
    p(f"""s_lshr_b32 s{sOFF}, s{sT16}, 1
          s_lshl_b32 s{sOFF}, s{sOFF}, 12
          s_lshl_b32 s{sT0}, s{sT3}, 6
          s_add_u32 s{sOFF}, s{sOFF}, s{sT0}
          s_add_u32 s{sOFF}, s{sOFF}, {WS_OX}""")
    for k in range(8):
        p(buf_load(vOF + 64 + k, 1, vOX, S_WS, sOFF, (k >> 2) * 2048 + (k & 3) * 128, fl))
    p(f's_mul_i32 s{sOB}, s{sT16}, {16*1152}')
    for n in range(5):
        p(buf_load(vXX + 2 * n, 2, vXO if n < 4 else vXM, S_X, sOB, 32 * n if n < 4 else 0))
    make_ident(p, aID, t)
    p(f"""v_and_b32 v{t+2}, 3, v{vLANE}            ; cc
          v_bfe_u32 v{t+3}, v{vLANE}, 2, 3         ; rho
          v_lshrrev_b32 v{t+4}, 5, v{vLANE}        ; hh
          v_lshlrev_b32 v{t+4}, 10, v{t+4}
          v_lshl_add_u32 v{t+4}, v{t+3}, 7, v{t+4}
          v_lshl_add_u32 v{t+4}, v{t+2}, 3, v{t+4}
          v_lshrrev_b32 v{t+5}, 1, v{t+3}
          v_lshl_add_u32 v{vA}, v{t+5}, 5, v{t+4}
          v_xor_b32 v{vA+1}, 32, v{vA}
          v_xor_b32 v{vA+2}, 64, v{vA}
          v_xor_b32 v{vA+3}, 0x60, v{vA}""")
    vA2 = t + 6
    for k in range(4):
        p(f'v_add_u32 v{vA2+k}, 0x10000, v{vA+k}')
    p(wait(wd), barrier())
    stamp(p, cfg, 1)

    def ploads(j):
        p(f's_add_u32 s{sOFF}, s{sPB}, {j*4*36*1024}')
        p(buf_load(PR(j), 4, 15, S_WS, sOFF, 0, fl), buf_load(PR(j) + 4, 4, 15, S_WS, sOFF, 2048, fl), buf_load(PR(j) + 8, 2, vPM, S_WS, sOFF, 0, fl))
    for j in range(11):
        ploads(j)
    fr = []
    for ks in range(18):
        for n in range(5):
            if n < 4:
                grp, jj = ks, n
            else:
                grp, jj = 18 + (ks >> 2), ks & 3
            fr.append((ks, n, (vA if grp < 16 else vA2) + jj, (grp & 15) * 4096))
    NB, D = 8, 6
    rds = {}

    def rd(i):
        ks, n, ar, off = fr[i]
        rds[i] = [ds_read('b64_tr_b16', aFR + 4 * (i % NB) + 2 * h, ar, off + 2048 * h) for h in range(2)]
        return rds[i]
    for i in range(D):
        p(rd(i))
    p(wait(rds[0]))
    for i, (ks, n, ar, off) in enumerate(fr):
        p(mfma('16x32', vSA + 4 * n, aFR + 4 * (i % NB), vOF + 4 * ks, None if ks == 0 else vSA + 4 * n))
        if i + 1 < len(fr):
            p(wait(rds[i + 1]))
        if i + D < len(fr):
            p(rd(i + D))
    stamp(p, cfg, 2)
    for j in range(11, 16):
        ploads(j)
    for j in range(16):
        for n in range(5):
            p(mfma('16x16', vB + 4 * n, aID, PR(j) + 2 * n, None if j == 0 else vB + 4 * n))
    stamp(p, cfg, 3)
    vE = vOF
    for r in range(20):
        p(f'v_mul_f32 v{vE+r}, {f2u(-1.4426950408889634)}, v{vB+r}')
    for r in range(20):
        p(f'v_exp_f32 v{vE+r}, v{vE+r}')
    for r in range(20):
        p(f'v_add_f32 v{vE+r}, 1.0, v{vE+r}')
    for r in range(20):
        p(f'v_rcp_f32 v{vE+r}, v{vE+r}')
    for r in range(20):
        p(f'v_mul_f32 v{vB+r}, v{vB+r}, v{vE+r}')
    for r in range(10):
        p(f"""v_lshlrev_b32 v{vE+2*r}, 16, v{vXX+r}
              v_and_b32 v{vE+2*r+1}, 0xffff0000, v{vXX+r}""")
    for n in range(5):
        for r in range(4 * n, 4 * n + 4):
            p(f'v_fma_f32 v{vE+r}, v{vSA+r}, v{vB+r}, v{vE+r}')
        for k in range(2):
            p(f'v_cvt_pk_bf16_f32 v{vXX+2*n+k}, v{vE+4*n+2*k}, v{vE+4*n+2*k+1}')
        p(buf_store(vXX + 2 * n, 2, vXO if n < 4 else vXM, S_OUT, sOB, 32 * n if n < 4 else 0))
    stamp(p, cfg, 4)
    p(wait(vm0=True))
    stamp(p, cfg, 5)
    write_stamps(p, cfg, 6, WS_STAMP + 131072)
    p(label('L_k3_end'), raw('s_endpgm'))
    return finalize(p.seq, verbose=0, name='k3')


def kernel_text(name, seq):
    return f'.text\n.globl {name}\n.p2align 8\n.type {name},@function\n{name}:\n' + text_of(seq)


def kernel_desc(name, nv=512, acc=256, ns=102):
    return f'''.section .rodata,"a"
.p2align 6
.amdhsa_kernel {name}
  .amdhsa_next_free_vgpr {nv}
  .amdhsa_next_free_sgpr {ns}
  .amdhsa_accum_offset {acc}
  .amdhsa_group_segment_fixed_size 0
  .amdhsa_kernarg_size 80
  .amdhsa_user_sgpr_count 2
  .amdhsa_user_sgpr_kernarg_segment_ptr 1
  .amdhsa_system_sgpr_workgroup_id_x 1
.end_amdhsa_kernel
'''


def build_file(kernels):
    s = '; generated by work/gen.py\n'
    for name, seq, lds in kernels:
        s += f'; @launch kernel={name} grid=(256,1,1) block=(256,1,1) lds={lds}\n'
    s += '.amdgcn_target "amdgcn-amd-amdhsa--gfx950"\n'
    for name, seq, lds in kernels:
        s += kernel_text(name, seq)
    for name, seq, lds in kernels:
        s += kernel_desc(name)
    return s


if __name__ == '__main__':
    cfg = Cfg()
    out = 'k1.s'
    for a in sys.argv[1:]:
        k, _, v = a.partition('=')
        if k == 'out':
            out = v
        else:
            cur = getattr(cfg, k)
            setattr(cfg, k, type(cur)(int(v)) if isinstance(cur, (bool, int)) else v)
    open(out, 'w').write(build_file([('k1_kernel', gen_k1(cfg), 163840), ('k2_kernel', gen_k2(cfg), 43008), ('k3_kernel', gen_k3(cfg), 94208)]))
```

```python
import re

A0 = 256


def rn(n, cnt=1):
    if n < 256:
        assert n + cnt <= 256, (n, cnt)
        k, b = 'v', n
    else:
        assert n + cnt <= 512, (n, cnt)
        k, b = 'a', n - 256
    return f'{k}{b}' if cnt == 1 else f'{k}[{b}:{b+cnt-1}]'


def rr(n, cnt):
    return list(range(n, n + cnt))


def sn(n, cnt=1):
    return f's{n}' if cnt == 1 else f's[{n}:{n+cnt-1}]'


class I:
    __slots__ = ('text', 'kind', 'rd', 'wr', 'passes', 'ab', 'c', 'targets', 'lds', 'wide', 'nops', 'tag', 'vm0', 'lg0', 'perm', 'store')

    def __init__(self, text, kind, rd=(), wr=(), **kw):
        self.text = text
        self.kind = kind
        self.rd = list(rd)
        self.wr = list(wr)
        self.passes = kw.get('passes', 0)
        self.ab = kw.get('ab', [])
        self.c = kw.get('c', [])
        self.targets = kw.get('targets', [])
        self.lds = kw.get('lds', False)
        self.wide = kw.get('wide', [])
        self.nops = kw.get('nops', 1)
        self.tag = kw.get('tag', None)
        self.vm0 = kw.get('vm0', False)
        self.lg0 = kw.get('lg0', False)
        self.perm = kw.get('perm', False)
        self.store = kw.get('store', False)

    def __repr__(self):
        return self.text


_tok = re.compile(r'^(-?)(abs\()?([vas])(\d+|\[(\d+):(\d+)\])\)?$')


def parse_operand(op):
    op = op.strip()
    if op in ('vcc', 'exec', 'm0', 'scc'):
        return [op]
    if op in ('vcc_lo', 'vcc_hi'):
        return ['vcc']
    if op in ('exec_lo', 'exec_hi'):
        return ['exec']
    m = _tok.match(op)
    if not m:
        return []
    k = m.group(3)
    if m.group(5) is not None:
        lo, hi = int(m.group(5)), int(m.group(6))
    else:
        lo = hi = int(m.group(4))
    if k == 's':
        return [f's{i}' for i in range(lo, hi + 1)]
    off = 256 if k == 'a' else 0
    return list(range(lo + off, hi + 1 + off))


TRANS = ('v_exp_f32', 'v_log_f32', 'v_rcp_f32', 'v_rsq_f32', 'v_sqrt_f32', 'v_sin_f32', 'v_cos_f32')
RMW = ('v_fmac_f32', 'v_writelane_b32', 's_addk_i32', 's_mulk_i32', 's_cmov_b32', 's_bitset1_b32', 's_bitset0_b32')
NO_SCC = ('s_mov_b32', 's_mov_b64', 's_mul_i32', 's_movk_i32', 's_mul_hi_u32', 's_cselect_b32', 's_cselect_b64', 's_getpc_b64', 's_setprio', 's_sleep', 's_bitset1_b32', 's_bitset0_b32')


def op(text, **kw):
    text = text.strip()
    name, _, rest = text.partition(' ')
    ops = [o.strip() for o in rest.split(',')] if rest else []
    if ops:
        ops[-1] = ops[-1].split(' ')[0]
    base = name.replace('_e32', '').replace('_e64', '')
    if name.startswith('v_'):
        kind = 'trans' if base in TRANS else 'valu'
        if base.startswith('v_permlane') and base.endswith('swap_b32'):
            r = parse_operand(ops[0]) + parse_operand(ops[1])
            return I(text, 'valu', r, r, perm=True, **kw)
        wr = parse_operand(ops[0])
        rd = []
        srcs = ops[1:]
        if base in ('v_add_co_u32', 'v_sub_co_u32', 'v_addc_co_u32'):
            wr += parse_operand(ops[1])
            srcs = ops[2:]
        for o in srcs:
            rd += parse_operand(o)
        if base in RMW:
            rd += wr
        return I(text, kind, rd, wr, **kw)
    if name.startswith('s_'):
        if name.startswith('s_cmp') or name.startswith('s_bitcmp'):
            rd = []
            for o in ops:
                rd += parse_operand(o)
            return I(text, 'salu', rd, ['scc'], **kw)
        if name in ('s_setprio', 's_sleep'):
            return I(text, 'salu', **kw)
        wr = parse_operand(ops[0])
        rd = []
        for o in ops[1:]:
            rd += parse_operand(o)
        if name in RMW:
            rd += wr
        if name.startswith('s_cselect') or name.startswith('s_addc') or name.startswith('s_subb') or name.startswith('s_cmov'):
            rd.append('scc')
        if name not in NO_SCC:
            wr = wr + ['scc']
        if 'saveexec' in name:
            rd.append('exec')
            wr.append('exec')
        return I(text, 'salu', rd, wr, **kw)
    raise ValueError(text)


MF = {
    '16x32': ('v_mfma_f32_16x16x32_bf16', 4, 4, 4, 4),
    '16x16': ('v_mfma_f32_16x16x16_bf16', 2, 2, 4, 4),
    '32x16': ('v_mfma_f32_32x32x16_bf16', 4, 4, 16, 8),
    '32x8': ('v_mfma_f32_32x32x8_bf16', 2, 2, 16, 8),
    '32x4_2b': ('v_mfma_f32_32x32x4_2b_bf16', 2, 2, 32, 16),
}


def mfma(shape, d, a, b, c, mod=''):
    nm, na, nb, nd, p = MF[shape]
    if c is not None:
        assert (c < 256) == (d < 256)
    ct = '0' if c is None else rn(c, nd)
    cr = [] if c is None else rr(c, nd)
    ab = rr(a, na) + rr(b, nb)
    assert a % 2 == 0 and b % 2 == 0 and d % 2 == 0
    return I(f'{nm} {rn(d, nd)}, {rn(a, na)}, {rn(b, nb)}, {ct}{" " + mod if mod else ""}', 'mfma', ab + cr, rr(d, nd), passes=p, ab=ab, c=cr)


def smfmac(d, a, b, idx):
    ab = rr(a, 4) + rr(b, 8) + [idx]
    return I(f'v_smfmac_f32_32x32x32_bf16 {rn(d, 16)}, {rn(a, 4)}, {rn(b, 8)}, {rn(idx)}', 'mfma', ab + rr(d, 16), rr(d, 16), passes=8, ab=ab, c=rr(d, 16))


def ds_read(kind, d, addr, off=0):
    n = {'b32': 1, 'b64': 2, 'b128': 4, 'b64_tr_b16': 2, 'b96': 3}[kind]
    assert 0 <= off < 65536, off
    return I(f'ds_read_{kind} {rn(d, n)}, {rn(addr)}' + (f' offset:{off}' if off else ''), 'ds', [addr], rr(d, n))


def ds_write(kind, addr, s, off=0):
    n = {'b32': 1, 'b64': 2, 'b128': 4, 'b96': 3}[kind]
    assert 0 <= off < 65536, off
    return I(f'ds_write_{kind} {rn(addr)}, {rn(s, n)}' + (f' offset:{off}' if off else ''), 'ds', [addr] + rr(s, n), [], store=True)


_W = {1: 'dword', 2: 'dwordx2', 3: 'dwordx3', 4: 'dwordx4'}


def _so(soff):
    return ('0', []) if soff is None else (f's{soff}', [f's{soff}'])


def buf_load(d, n, voff, srd, soff=None, off=0, fl=''):
    st, sr = _so(soff)
    assert 0 <= off < 4096
    return I(f'buffer_load_{_W[n]} {rn(d, n)}, {rn(voff)}, {sn(srd, 4)}, {st} offen' + (f' offset:{off}' if off else '') + (f' {fl}' if fl else ''),
             'vmem', [voff] + sr + [f's{srd+i}' for i in range(4)], rr(d, n))


def buf_dma(voff, srd, soff=None, off=0, fl=''):
    st, sr = _so(soff)
    assert 0 <= off < 4096
    return I(f'buffer_load_dwordx4 {rn(voff)}, {sn(srd, 4)}, {st} offen' + (f' offset:{off}' if off else '') + (f' {fl}' if fl else '') + ' lds',
             'vmem', [voff, 'm0'] + sr + [f's{srd+i}' for i in range(4)], [], lds=True)


def buf_store(s, n, voff, srd, soff=None, off=0, fl=''):
    st, sr = _so(soff)
    assert 0 <= off < 4096
    return I(f'buffer_store_{_W[n]} {rn(s, n)}, {rn(voff)}, {sn(srd, 4)}, {st} offen' + (f' offset:{off}' if off else '') + (f' {fl}' if fl else ''),
             'vmem', [voff] + rr(s, n) + sr + [f's{srd+i}' for i in range(4)], [], wide=rr(s, n) if n >= 3 else [], store=True)


def buf_atomic_add(s, voff, srd, soff=None, off=0, fl=''):
    st, sr = _so(soff)
    return I(f'buffer_atomic_add {rn(s)}, {rn(voff)}, {sn(srd, 4)}, {st} offen' + (f' offset:{off}' if off else '') + (f' {fl}' if fl else ''),
             'vmem', [voff, s] + sr + [f's{srd+i}' for i in range(4)], [], store=True)


def smem(text):
    name, _, rest = text.partition(' ')
    ops = [o.strip() for o in rest.split(',')]
    rd = []
    for o in ops[1:]:
        rd += parse_operand(o)
    return I(text, 'smem', rd, parse_operand(ops[0]))


def wait(*targets, vm0=False, lg0=False):
    t = []
    for x in targets:
        if x is None:
            continue
        if isinstance(x, (list, tuple)):
            t += [y for y in x if y is not None]
        else:
            t.append(x)
    return I('s_waitcnt ?', 'wait', targets=t, vm0=vm0, lg0=lg0)


def barrier():
    return I('s_barrier', 'barrier')


def nop(n):
    return I(f's_nop {n-1}', 'nop', nops=n)


def label(name):
    return I(name + ':', 'label', nops=0)


def branch(text):
    rd = []
    if 'scc' in text:
        rd = ['scc']
    if 'vcc' in text:
        rd = ['vcc']
    if 'exec' in text:
        rd = ['exec']
    return I(text, 'branch', rd)


def raw(text):
    return I(text, 'raw', nops=0)


def is_v(r):
    return isinstance(r, int)


_D2AB = {2: 5, 4: 8, 8: 12, 16: 20}
_D2C = {2: 4, 4: 6, 8: 10, 16: 18}
_CWAR = {2: 1, 4: 3, 8: 7, 16: 15}


def need_states(p, c):
    n = 0
    pk, ck = p.kind, c.kind
    pv = pk in ('valu', 'trans')
    cv = ck in ('valu', 'trans')
    if pv:
        pw = set(p.wr)
        vw = {r for r in pw if is_v(r)}
        sw = pw - vw
        if vw:
            hit = vw.intersection(c.rd)
            if hit:
                if ck == 'mfma':
                    n = max(n, 2)
                if cv and c.perm:
                    n = max(n, 2)
                if cv and ('readlane' in c.text or 'readfirstlane' in c.text):
                    n = max(n, 1)
                if cv and ('dpp' in c.text or 'row_' in c.text or 'quad_perm' in c.text):
                    n = max(n, 2)
                if pk == 'trans' and ck == 'valu':
                    n = max(n, 1)
                if pk == 'trans' and ck in ('ds', 'vmem'):
                    n = max(n, 1)
                if cv and ('sdwa' in p.text or 'op_sel' in p.text):
                    n = max(n, 1)
        if sw:
            hit = sw.intersection(c.rd)
            if hit:
                if ck == 'vmem':
                    n = max(n, 5)
                if cv:
                    n = max(n, 4 if 'lane_b32' in c.text else 2)
                if ck in ('salu', 'branch', 'smem'):
                    n = max(n, 5 if ck == 'branch' else 2)
            if 'exec' in sw:
                n = max(n, 5)
    if pk == 'mfma':
        pw = set(p.wr)
        if ck == 'mfma':
            if pw.intersection(c.ab):
                n = max(n, _D2AB[p.passes])
            if pw.intersection(c.c):
                if p.wr == c.c and p.passes == c.passes:
                    n = max(n, 2 if p.passes == 2 else 0)
                else:
                    n = max(n, _D2C[p.passes])
            elif pw.intersection(c.wr) and p.passes != c.passes:
                n = max(n, _D2C[p.passes])
        elif cv or ck in ('ds', 'vmem'):
            if pw.intersection(c.rd) or pw.intersection(c.wr):
                n = max(n, _D2AB[p.passes])
            if cv and set(p.c).intersection(c.wr):
                n = max(n, _CWAR[p.passes])
    if pk == 'salu' and 'm0' in p.wr and c.lds:
        n = max(n, 1)
    if p.wide and set(p.wide).intersection(c.wr):
        n = max(n, 2)
    return n


def pad_hazards(seq, report=None):
    out = []
    for c in seq:
        if c.kind not in ('label', 'raw', 'nop', 'wait', 'barrier'):
            dist = 0
            need = 0
            for p in reversed(out):
                if dist >= 20:
                    break
                k = need_states(p, c) - dist
                if k > need:
                    need = k
                    who = p
                dist += p.nops
            if need > 0:
                if report is not None:
                    report.append((need, who.text, c.text))
                while need > 0:
                    k = min(need, 16)
                    out.append(nop(k))
                    need -= k
        out.append(c)
    return out


def resolve_waits(seq, auto=True, report=None):
    out = []
    vm = []
    lg = []

    def do_wait(nv, nl):
        parts = []
        if nv is not None:
            nv = min(nv, 63)
            parts.append(f'vmcnt({nv})')
            del vm[:max(0, len(vm) - nv)]
        if nl is not None:
            nl = min(nl, 15)
            parts.append(f'lgkmcnt({nl})')
            del lg[:max(0, len(lg) - nl)]
        return I('s_waitcnt ' + ' '.join(parts), 'wait')

    def counts(targets):
        nv = nl = None
        for t in targets:
            if t in vm:
                k = len(vm) - 1 - vm.index(t)
                nv = k if nv is None else min(nv, k)
            elif t in lg:
                k = len(lg) - 1 - lg.index(t)
                if any(x.kind == 'smem' for x in lg):
                    k = 0
                nl = k if nl is None else min(nl, k)
        return nv, nl

    for c in seq:
        if c.kind == 'wait':
            if c.text != 's_waitcnt ?':
                raise ValueError('literal wait: ' + c.text)
            nv, nl = counts(c.targets)
            if c.vm0:
                nv = 0
            if c.lg0:
                nl = 0
            if nv is None and nl is None:
                continue
            out.append(do_wait(nv, nl))
            continue
        touched = set(c.rd) | set(c.wr)
        if touched:
            pend = [t for t in vm + lg if t.wr and touched.intersection(t.wr)]
            if c.kind == 'vmem' and not c.store:
                pend = [t for t in pend if t.kind != 'vmem' or set(c.rd).intersection(t.wr)]
            if c.kind == 'ds' and not c.store:
                pend = [t for t in pend if t.kind != 'ds' or set(c.rd).intersection(t.wr)]
            if pend:
                if not auto:
                    raise ValueError(f'missing wait before {c.text}: {pend}')
                if report is not None:
                    report.append((c.text, pend[-1].text))
                out.append(do_wait(*counts(pend)))
        if c.kind == 'vmem':
            vm.append(c)
            assert len(vm) <= 63, 'vmcnt overflow at ' + c.text
        elif c.kind in ('ds', 'smem'):
            lg.append(c)
            if len(lg) > 15:
                pass
        out.append(c)
    return out


def finalize(seq, verbose=False, name=''):
    r1, r2 = [], []
    s = resolve_waits(seq, report=r1)
    s = pad_hazards(s, report=r2)
    if verbose:
        print(f'[{name}] {len(s)} instrs, auto waits {len(r1)}, hazard nops {len(r2)}')
        for x in r1[:verbose]:
            print('   wait:', x)
        for x in r2[:verbose]:
            print('   nop:', x)
    return s


def text_of(seq):
    return '\n'.join(i.text for i in seq) + '\n'


class Stream:
    def __init__(self):
        self.m, self.s, self.d, self.v = [], [], [], []
        self.cap = []
        self.over = 0

    def add(self, m, cap=8):
        self.m.append(m)
        self.s.append([])
        self.d.append([])
        self.v.append([])
        self.cap.append(cap)
        return len(self.m) - 1

    def __len__(self):
        return len(self.m)

    @staticmethod
    def cost(i):
        return 8 if (i.kind == 'trans' or i.perm) else 4

    def used(self, g):
        return sum(self.cost(i) for i in self.d[g]) + sum(self.cost(i) for i in self.v[g]) + 4 * max(0, len(self.s[g]) - 1)

    @staticmethod
    def slot(i):
        if i.kind in ('valu', 'trans'):
            return 2
        if i.kind in ('ds', 'vmem'):
            return 1
        return 0

    def fits(self, g, i):
        if self.slot(i) == 0 and not self.s[g]:
            return True
        return self.used(g) + self.cost(i) <= self.cap[g]

    def put(self, g, i):
        (self.s, self.d, self.v)[self.slot(i)][g].append(i)
        return g

    def place(self, i, lo, hi=None, free_only=False):
        n = len(self.m)
        hi = n - 1 if hi is None else min(hi, n - 1)
        lo = max(lo, 0)
        assert lo <= hi, (i.text, lo, hi)
        if self.slot(i) == 0:
            for g in range(lo, hi + 1):
                if not self.s[g]:
                    return self.put(g, i)
        for g in range(lo, hi + 1):
            if self.fits(g, i):
                return self.put(g, i)
        g = min(range(lo, hi + 1), key=lambda x: self.used(x) - self.cap[x])
        self.over += 1
        return self.put(g, i)

    def chain(self, instrs, lo, hi=None):
        n = len(self.m)
        hi = n - 1 if hi is None else min(hi, n - 1)
        plan, g, prev = [], lo, None
        extra = 0
        while True:
            plan, g, prev, ok = [], lo, None, True
            tmp = {}
            for i in instrs:
                if prev is not None and self.slot(i) < self.slot(prev):
                    g += 1
                while g <= hi:
                    u = self.used(g) + tmp.get(g, 0)
                    free_s = self.slot(i) == 0 and not self.s[g] and not tmp.get(('s', g))
                    if free_s or u + self.cost(i) <= self.cap[g] + extra:
                        break
                    g += 1
                if g > hi:
                    ok = False
                    break
                if self.slot(i) == 0 and not self.s[g] and not tmp.get(('s', g)):
                    tmp[('s', g)] = 1
                else:
                    tmp[g] = tmp.get(g, 0) + self.cost(i)
                plan.append(g)
                prev = i
            if ok:
                break
            extra += 4
            assert extra < 400, 'chain does not fit'
        if extra:
            self.over += 1
        for i, g in zip(instrs, plan):
            self.put(g, i)
        return plan

    def flat(self):
        out = []
        for g in range(len(self.m)):
            out.append(self.m[g])
            out += self.s[g] + self.d[g] + self.v[g]
        return out

    def est_cycles(self):
        t = 0
        for g in range(len(self.m)):
            m = self.m[g]
            t += m.passes * 4 + max(0, self.used(g) - self.cap[g])
        return t
```

```python
import gen
from gen import *
def wkern(name, off, fl, n=36, load=False):
    cfg = Cfg()
    p = Prog()
    common_setup(p, cfg, f'L_{name}_end')
    p(f's_lshl_b32 s{sT0}, s2, 2\ns_add_u32 s{sT0}, s{sT0}, s{sW}\ns_mul_i32 s{sT0}, s{sT0}, {n*1024}\ns_add_u32 s{sT0}, s{sT0}, {off}')
    for r in range(4): p(f'v_mov_b32 v{16+r}, v{vLANE}')
    for t in range(n):
        p(f's_add_u32 s{sT1}, s{sT0}, {t*1024}')
        p(buf_load(16+4*t, 4, vL16, S_WS, sT1, 0, fl) if load else buf_store(16, 4, vL16, S_WS, sT1, 0, fl))
    p(wait(vm0=True), label(f'L_{name}_end'), raw('s_endpgm'))
    return finalize(p.seq)
cfg = Cfg()
ks = [('k1_kernel', gen_k1(cfg), 163840), ('k2_kernel', gen_k2(cfg), 43008), ('k3_kernel', gen_k3(cfg), 94208)]
def mk(fn, pre, post=[]):
    open(fn, 'w').write(build_file(pre + ks + post))
mk('xa.s', [('w_kernel', wkern('w', 128 << 20, 'sc1'), 0)])
mk('xb.s', [('w_kernel', wkern('w', 216 << 20, 'sc1'), 0)])
mk('xc.s', [('w_kernel', wkern('w', 128 << 20, ''), 0)])
mk('xd.s', [('w_kernel', wkern('w', 128 << 20, 'nt'), 0)])
mk('xe.s', [('w_kernel', wkern('w', 128 << 20, '', load=True), 0)])
mk('xf.s', [('w_kernel', wkern('w', 216 << 20, '', load=True), 0)])
```
